```python
import torch

def _softmax(x, axis=-1):
    return torch.softmax(x, dim=axis)
def _gelu(x):
    return torch.nn.functional.gelu(x, approximate="tanh")
def _silu(x):
    return torch.nn.functional.silu(x)
def _sigmoid(x):
    return torch.sigmoid(x)
def _layernorm(x, axis=-1, eps=1e-5):
    m = x.mean(dim=axis, keepdim=True)
    v = x.var(dim=axis, keepdim=True, unbiased=False)
    return (x - m) / torch.sqrt(v + eps)
def _scatter_add(tgt, idx, src, axis=0):
    return tgt.clone().index_add_(axis, idx, src)
def _segment_sum(src, seg, n):
    out = torch.zeros((n,) + src.shape[1:], dtype=src.dtype)
    return out.index_add_(0, seg, src)
def _pad(x, pw):
    flat = tuple(v for pair in reversed(pw) for v in pair)
    return torch.nn.functional.pad(x, flat)

kernel_name = 'concat_heads__linear_attn_block__grouped_kv_mqa__prompt'

def setup_inputs():

    _w = (lambda a: (lambda t: t.to(torch.bfloat16) if t.is_floating_point() else t)(torch.as_tensor(a)))
    def _A_setup():
        B, S, D = 1, 2048, 512
        return {
            "x": _w((lambda *s: torch.randn(*s, dtype=torch.bfloat16) * 0.05)(B, S, D)),
            "wqkv": _w((lambda *s: torch.randn(*s, dtype=torch.bfloat16) * 0.8)(D, 3 * D)),
            "wo": _w((lambda *s: torch.randn(*s, dtype=torch.bfloat16) * 0.05)(D, D)),
        }
    _A_in = _A_setup()

    def _B_setup():
        B, S, D, H = 1, 2048, 512, 32
        Dh = D // H
        return {
            "x": _w((lambda *s: torch.randn(*s, dtype=torch.bfloat16) * 0.05)(B, S, D)),
            "wq": _w((lambda *s: torch.randn(*s, dtype=torch.bfloat16) * 1.6)(D, H * Dh)),
            "wk": _w((lambda *s: torch.randn(*s, dtype=torch.bfloat16) * 1.6)(D, Dh)),
            "wv": _w((lambda *s: torch.randn(*s, dtype=torch.bfloat16) * 0.05)(D, Dh)),
            "wo": _w((lambda *s: torch.randn(*s, dtype=torch.bfloat16) * 0.05)(H * Dh, D)),
        }
    _B_in = _B_setup()

    return {
        "A_x": _A_in["x"],
        "A_wqkv": _A_in["wqkv"],
        "A_wo": _A_in["wo"],
        "B_x": _B_in["x"],
        "B_wq": _B_in["wq"],
        "B_wk": _B_in["wk"],
        "B_wv": _B_in["wv"],
        "B_wo": _B_in["wo"],
    }

def reference(A_x, A_wqkv, A_wo, B_x, B_wq, B_wk, B_wv, B_wo):
    def _A_ref(x, wqkv, wo):
        B, S, D = x.shape
        H = 32; Dh = D // H
        qkv = (lambda x, *d: x.permute(*d))((x @ wqkv).reshape(B, S, 3, H, Dh), 2, 0, 3, 1, 4)
        q, k, v = qkv[0], qkv[1], qkv[2]
        phi = lambda t: torch.where(t > 0, t + 1, torch.exp(t)) + 1e-6
        pq, pk = phi(q), phi(k)
        kv = torch.einsum("bhsd,bhse->bhde", pk, v)
        z = torch.einsum("bhsd->bhd", pk)
        num = torch.einsum("bhqd,bhde->bhqe", pq, kv)
        den = torch.einsum("bhqd,bhd->bhq", pq, z)[..., None] + 1e-6
        o = num / den
        return (lambda x, *d: x.permute(*d))(o, 0, 2, 1, 3).reshape(B, S, D) @ wo

    def _B_ref(x, wq, wk, wv, wo):
        B, S, D = x.shape
        H = 32
        Dh = D // H
        q = (lambda x, *d: x.permute(*d))((x @ wq).reshape(B, S, H, Dh), 0, 2, 1, 3)
        k = x @ wk
        v = x @ wv
        scores = torch.einsum("bhqd,bkd->bhqk", q, k) * (Dh ** -0.5)
        p = _softmax(scores, axis=-1)
        o = torch.einsum("bhqk,bkd->bhqd", p, v)
        return (lambda x, *d: x.permute(*d))(o, 0, 2, 1, 3).reshape(B, S, H * Dh) @ wo

    a = _A_ref(A_x, A_wqkv, A_wo)
    b = _B_ref(B_x, B_wq, B_wk, B_wv, B_wo)
    return torch.concatenate([a, b], axis=-1)
```

```python
import re

TRANS = ("v_exp_f32", "v_log_f32", "v_rcp_f32", "v_rsq_f32", "v_sqrt_f32", "v_sin_f32", "v_cos_f32", "v_exp_f16", "v_rcp_iflag_f32")

def regs_of(tok):
    tok = tok.strip()
    tok = tok.lstrip("-")
    m = re.fullmatch(r"abs\((.*)\)", tok)
    if m: tok = m.group(1)
    m = re.fullmatch(r"\|(.*)\|", tok)
    if m: tok = m.group(1)
    m = re.fullmatch(r"([vas])(\d+)", tok)
    if m: return {(m.group(1), int(m.group(2)))}
    m = re.fullmatch(r"([vas])\[(\d+):(\d+)\]", tok)
    if m: return {(m.group(1), i) for i in range(int(m.group(2)), int(m.group(3)) + 1)}
    if tok in ("vcc", "vcc_lo", "vcc_hi"): return {("vcc", 0)}
    if tok in ("exec", "exec_lo", "exec_hi"): return {("exec", 0)}
    if tok == "m0": return {("m0", 0)}
    return set()

class Ins:
    def __init__(self, text):
        self.text = text
        t = text.split(";")[0].strip()
        self.kind = "other"
        self.op = ""
        self.wr = set(); self.rd = set()
        self.srcC = set(); self.srcAB = set(); self.dataregs = set()
        self.ws = 1
        if not t or t.endswith(":") or t.startswith("."):
            self.kind = "label" if t.endswith(":") else "directive"
            self.ws = 0
            return
        parts = t.split(None, 1)
        op = parts[0]; self.op = op
        rest = parts[1] if len(parts) > 1 else ""
        ops = [o.strip() for o in rest.split(",")] if rest else []
        if ops:
            last = ops[-1].split()
            if last:
                ops[-1] = last[0]; self.mods = last[1:]
            else: self.mods = []
        else: self.mods = []
        base = re.sub(r"_e(32|64)$", "", op)
        self.base = base
        if op == "s_nop":
            self.kind = "nop"; self.ws = int(ops[0], 0) + 1; return
        if op.startswith("v_mfma") or op.startswith("v_smfmac"):
            self.kind = "mfma"
            self.wr = regs_of(ops[0])
            self.srcAB = regs_of(ops[1]) | regs_of(ops[2])
            if op.startswith("v_smfmac"):
                self.srcC = regs_of(ops[0]); self.srcAB |= regs_of(ops[3])
            else:
                self.srcC = regs_of(ops[3])
            self.rd = self.srcAB | self.srcC
            self.passes = 8 if "32x32" in op else 4
            return
        if op.startswith("v_"):
            self.kind = "valu"
            if base.startswith("v_cmp"):
                self.wr = regs_of(ops[0]);
                if base.startswith("v_cmpx"): self.wr |= {("exec", 0)}
                for o in ops[1:]: self.rd |= regs_of(o)
            elif base.startswith("v_permlane") and "swap" in base:
                self.wr = regs_of(ops[0]) | regs_of(ops[1]); self.rd = set(self.wr)
            elif base in ("v_add_co_u32", "v_sub_co_u32", "v_addc_co_u32"):
                self.wr = regs_of(ops[0]) | regs_of(ops[1])
                for o in ops[2:]: self.rd |= regs_of(o)
            else:
                self.wr = regs_of(ops[0])
                for o in ops[1:]: self.rd |= regs_of(o)
                if base in ("v_fmac_f32", "v_dot2c_f32_bf16"): self.rd |= self.wr
                if base == "v_cndmask_b32" and len(ops) == 3: self.rd |= {("vcc", 0)}
            self.trans = base in TRANS
            self.dpp = any(m.startswith(("row_", "quad_perm", "wave_", "row_bcast")) for m in self.mods) or "dpp" in op
            return
        if op.startswith("ds_"):
            self.kind = "ds"
            if op.startswith("ds_read") or op.startswith("ds_bpermute") or op.startswith("ds_swizzle") or op.startswith("ds_permute"):
                self.wr = regs_of(ops[0])
                for o in ops[1:]: self.rd |= regs_of(o)
            elif "rtn" in op:
                self.wr = regs_of(ops[0])
                for o in ops[1:]: self.rd |= regs_of(o)
            else:
                for o in ops: self.rd |= regs_of(o)
            return
        if op.startswith("buffer_") or op.startswith("global_"):
            self.kind = "vmem"
            self.lds = "lds" in self.mods or "_lds_" in op
            if op in ("buffer_inv", "buffer_wbl2"): return
            if self.lds:
                for o in ops: self.rd |= regs_of(o)
                self.rd |= {("m0", 0)}
            elif "load" in op:
                self.wr = regs_of(ops[0])
                for o in ops[1:]: self.rd |= regs_of(o)
            else:
                for o in ops: self.rd |= regs_of(o)
                if op.startswith("buffer_"): d = regs_of(ops[0])
                else: d = regs_of(ops[1])
                if "atomic" in op and "sc0" in self.mods: self.wr = regs_of(ops[0])
                if "x3" in op or "x4" in op: self.dataregs = d
            return
        if op.startswith("s_"):
            self.kind = "salu"
            if op.startswith(("s_cmp", "s_cbranch", "s_branch", "s_waitcnt", "s_barrier", "s_endpgm", "s_setprio", "s_sleep", "s_bitcmp")):
                for o in ops: self.rd |= regs_of(o)
            else:
                if ops: self.wr = regs_of(ops[0])
                for o in ops[1:]: self.rd |= regs_of(o)
                if "saveexec" in op: self.wr |= {("exec", 0)}; self.rd |= {("exec", 0)}
            return

def vg(s): return {r for r in s if r[0] in ("v", "a")}
def sg(s): return {r for r in s if r[0] in ("s", "vcc")}

def required(p, c):
    need = 0
    if p.kind == "valu":
        pw_v = vg(p.wr); pw_s = sg(p.wr)
        if c.kind == "mfma" and pw_v & c.rd: need = max(need, 2)
        if c.kind == "mfma" and ("exec", 0) in p.wr: need = max(need, 4)
        if c.kind == "valu":
            if p.trans and not c.trans and pw_v & c.rd: need = max(need, 1)
            if p.trans and c.trans and pw_v & c.rd: need = max(need, 1)
            if c.base in ("v_readlane_b32", "v_readfirstlane_b32") and pw_v & c.rd: need = max(need, 1)
            if c.base.startswith("v_permlane") and pw_v & c.rd: need = max(need, 2)
            if c.dpp and pw_v & c.rd: need = max(need, 2)
            if pw_s & c.rd:
                need = max(need, 4 if c.base in ("v_readlane_b32", "v_writelane_b32") else 2)
            if ("exec", 0) in p.wr:
                if c.dpp: need = max(need, 5)
                if c.base in ("v_readlane_b32", "v_readfirstlane_b32", "v_writelane_b32") or c.base.startswith("v_permlane"): need = max(need, 4)
            if "sdwa" in p.op or any(m.startswith("op_sel") for m in p.mods):
                if pw_v & (c.rd | c.wr): need = max(need, 1)
        if c.kind == "vmem" and pw_s & c.rd: need = max(need, 5)
        if c.kind == "salu" and pw_s & c.rd: need = max(need, 1)
        if p.trans and c.kind in ("vmem", "ds") and pw_v & c.rd: need = max(need, 1)
    if p.kind == "mfma":
        P = p.passes
        big = {2: 5, 4: 8, 8: 12, 16: 20}[P]
        ovl = {2: 4, 4: 6, 8: 10, 16: 18}[P]
        war = {2: 1, 4: 3, 8: 7, 16: 15}[P]
        if c.kind == "mfma":
            if p.wr & c.srcAB: need = max(need, big)
            if p.wr & c.srcC:
                if not (p.wr == c.srcC and c.passes == P): need = max(need, ovl)
            elif p.wr & c.wr:
                need = max(need, ovl)
        elif c.kind in ("valu", "vmem", "ds"):
            if p.wr & (c.rd | c.wr): need = max(need, big)
            if c.kind == "valu" and p.srcC & c.wr: need = max(need, war)
            if c.kind in ("vmem", "ds") and p.srcC & c.wr: need = max(need, war)
    if p.kind == "salu":
        if ("m0", 0) in p.wr and c.kind == "vmem" and getattr(c, "lds", False): need = max(need, 1)
    if p.kind == "vmem" and p.dataregs:
        if c.kind == "valu" and p.dataregs & c.wr: need = max(need, 2)
        elif c.kind in ("ds", "vmem", "mfma") and p.dataregs & c.wr: need = max(need, 1)
    return need

class Asm:
    def __init__(self):
        self.lines = []
        self.loops = []
    def __call__(self, text):
        for l in text.split("\n"):
            if l.strip(): self.lines.append(Ins("    " + l.strip() if not l.strip().endswith(":") else l.strip()))
    def raw(self, text):
        for l in text.split("\n"):
            i = Ins.__new__(Ins); i.text = l; i.kind = "directive"; i.ws = 0; i.op = ""; i.wr = set(); i.rd = set()
            self.lines.append(i)
    def _need_before(self, hist, c):
        dist = 0; need = 0
        for p in reversed(hist):
            if p.kind in ("label", "directive"): continue
            r = required(p, c)
            if r > dist: need = max(need, r - dist)
            dist += p.ws
            if dist >= 24: break
        return need
    def finalize(self):
        out = []
        for c in self.lines:
            if c.kind not in ("label", "directive", "nop"):
                n = self._need_before(out[-40:], c)
                while n > 0:
                    k = min(n, 16)
                    out.append(Ins(f"    s_nop {k-1}")); n -= k
            out.append(c)
        labels = {}
        changed = True
        while changed:
            changed = False
            labels = {l.text[:-1]: i for i, l in enumerate(out) if l.kind == "label"}
            for i, b in enumerate(out):
                if b.kind == "salu" and (b.op.startswith("s_cbranch") or b.op == "s_branch"):
                    tgt = b.text.split(";")[0].split()[-1]
                    if tgt not in labels: continue
                    hist = out[max(0, i - 40): i + 1]
                    j = labels[tgt] + 1
                    seq = list(hist)
                    need = 0; acc = 0
                    while j < len(out) and acc < 24:
                        c = out[j]
                        if c.kind not in ("label", "directive"):
                            if c.kind != "nop":
                                n = self._need_before(seq, c)
                                need = max(need, n)
                            seq.append(c); acc += c.ws
                            if c.op in ("s_branch", "s_endpgm"): break
                        j += 1
                    if need > 0:
                        k = min(need, 16)
                        out.insert(i, Ins(f"    s_nop {k-1}"))
                        changed = True
                        break
        return "\n".join(l.text for l in out) + "\n"
```

```python
import sys, struct
sys.path.insert(0, "gen")
from asmlib import Asm

NAME = "concat_heads__linear_attn_block__grouped_kv_mqa__prompt"
WS_KV, WS_QB, WS_PQ, WS_OA, WS_OB, WS_KVP = 0, 0x40000, 0x240000, 0x440000, 0x640000, 0x840000
WS_SIZE = 0x1000000
TILE = 2112
def f32(x): return "0x%08x" % struct.unpack("<I", struct.pack("<f", x))[0]
LOG2E = 1.4426950408889634
QSCALE = 0.25 * LOG2E

def vr(a, n): return f"v[{a}:{a+n-1}]"
def sr(a, n): return f"s[{a}:{a+n-1}]"

def srd(A, d, lo, size):
    A(f"s_mov_b32 s{d}, s{lo}")
    A(f"s_and_b32 s{d+1}, s{lo+1}, 0xffff")
    A(f"s_mov_b32 s{d+2}, {size}")
    A(f"s_mov_b32 s{d+3}, 0x00020000")

def header(A, name):
    A.raw(f".text\n.globl {name}\n.p2align 8\n.type {name},@function")
    A(f"{name}:")

def footer(A, name, vgpr, sgpr=96):
    acc = (vgpr + 3) // 4 * 4
    A.raw(f""".section .rodata,"a"
.p2align 6
.amdhsa_kernel {name}
  .amdhsa_next_free_vgpr {vgpr}
  .amdhsa_next_free_sgpr {sgpr}
  .amdhsa_accum_offset {acc}
  .amdhsa_group_segment_fixed_size 0
  .amdhsa_kernarg_size 88
  .amdhsa_user_sgpr_count 2
  .amdhsa_user_sgpr_kernarg_segment_ptr 1
  .amdhsa_system_sgpr_workgroup_id_x 1
.end_amdhsa_kernel""")

def phi(A, base, n, tmp, s_l2e, s_eps):
    for i in range(0, n, 2):
        A(f"v_pk_mul_f32 {vr(tmp+i,2)}, {vr(base+i,2)}, {sr(s_l2e,2)}")
    for i in range(n):
        A(f"v_exp_f32 v{tmp+i}, v{tmp+i} clamp")
        A(f"v_max_f32 v{base+i}, 0, v{base+i}")
    for i in range(0, n, 2):
        A(f"v_pk_add_f32 {vr(base+i,2)}, {vr(base+i,2)}, {vr(tmp+i,2)}")
    for i in range(0, n, 2):
        A(f"v_pk_add_f32 {vr(base+i,2)}, {vr(base+i,2)}, {sr(s_eps,2)}")

def gen_k1(A):
    name = "proj_kernel"
    header(A, name)
    sX, sW, sWS, sWK, sWV = 4, 8, 12, 16, 20
    s_type, s_rb, s_cb, s_w, s_str = 24, 25, 26, 27, 28
    s_xoff, s_woff, s_m0x, s_t0, s_t1, s_t2 = 29, 30, 31, 32, 33, 34
    s_l2e, s_eps, s_qs = 36, 38, 40
    P = 44
    A("s_cmp_ge_u32 s2, 256")
    A("s_cbranch_scc1 K1_END")
    A(f"s_load_dwordx16 {sr(P,16)}, s[0:1], 0")
    A(f"s_load_dwordx2 {sr(P+16,2)}, s[0:1], 80")
    A("v_lshrrev_b32 v1, 6, v0")
    A("v_and_b32 v0, 63, v0")
    A(f"v_readfirstlane_b32 s{s_w}, v1")
    A(f"s_and_b32 s{s_t0}, s2, 7")
    A(f"s_lshr_b32 s{s_t1}, s2, 3")
    A(f"s_and_b32 s{s_rb}, s{s_t0}, 3")
    A(f"s_lshl_b32 s{s_rb}, s{s_rb}, 2")
    A(f"s_lshr_b32 s{s_t2}, s{s_t1}, 3")
    A(f"s_add_u32 s{s_rb}, s{s_rb}, s{s_t2}")
    A(f"s_and_b32 s{s_cb}, s{s_t1}, 7")
    A(f"s_mov_b32 s{s_type}, 0")
    A(f"s_cmp_lt_u32 s{s_t0}, 4")
    A("s_cbranch_scc1 K1_TYPED")
    A(f"s_lshr_b32 s{s_type}, s{s_cb}, 2")
    A(f"s_add_u32 s{s_type}, s{s_type}, 1")
    A(f"s_and_b32 s{s_cb}, s{s_cb}, 3")
    A("K1_TYPED:")
    A(f"s_mov_b32 s{s_l2e}, {f32(LOG2E)}"); A(f"s_mov_b32 s{s_l2e+1}, {f32(LOG2E)}")
    A(f"s_mov_b32 s{s_eps}, {f32(1e-6)}"); A(f"s_mov_b32 s{s_eps+1}, {f32(1e-6)}")
    A(f"s_mov_b32 s{s_qs}, {f32(QSCALE)}"); A(f"s_mov_b32 s{s_qs+1}, {f32(QSCALE)}")
    A("s_waitcnt lgkmcnt(0)")
    A(f"s_cmp_eq_u32 s{s_type}, 2")
    A(f"s_cselect_b32 s{sX}, s{P+6}, s{P+0}")
    A(f"s_cselect_b32 s{sX+1}, s{P+7}, s{P+1}")
    A(f"s_cselect_b32 s{sW}, s{P+8}, s{P+2}")
    A(f"s_cselect_b32 s{sW+1}, s{P+9}, s{P+3}")
    A(f"s_mov_b32 s{sW+2}, 1572864")
    A(f"s_cselect_b32 s{sW+2}, 524288, s{sW+2}")
    A(f"s_mov_b32 s{s_str}, 3072")
    A(f"s_cselect_b32 s{s_str}, 1024, s{s_str}")
    A(f"s_and_b32 s{sX+1}, s{sX+1}, 0xffff")
    A(f"s_and_b32 s{sW+1}, s{sW+1}, 0xffff")
    A(f"s_mov_b32 s{sX+2}, 2097152")
    A(f"s_mov_b32 s{sX+3}, 0x00020000")
    A(f"s_mov_b32 s{sW+3}, 0x00020000")
    srd(A, sWS, P+16, WS_SIZE)
    srd(A, sWK, P+10, 16384)
    srd(A, sWV, P+12, 16384)
    vXe, vXo, vWd, vL16 = 2, 3, 4, 5
    A("v_lshrrev_b32 v6, 3, v0")
    A("v_lshlrev_b32 v6, 10, v6")
    A("v_lshrrev_b32 v7, 4, v0")
    A("v_and_b32 v8, 7, v0")
    A("v_xor_b32 v8, v8, v7")
    A(f"v_lshl_add_u32 v{vXe}, v8, 4, v6")
    A(f"v_xor_b32 v{vXo}, 64, v{vXe}")
    A(f"s_cmp_eq_u32 s{s_type}, 0")
    A(f"s_lshl_b32 s{s_t0}, s{s_cb}, 7")
    A(f"s_lshl_b32 s{s_t1}, s{s_cb}, 6")
    A(f"s_add_u32 s{s_t1}, s{s_t1}, 512")
    A(f"s_cmp_eq_u32 s{s_type}, 0")
    A(f"s_cselect_b32 s{s_t0}, s{s_t1}, s{s_t0}")
    A(f"s_cselect_b32 s{s_t1}, 512, 32")
    A(f"s_cselect_b32 s{s_t2}, 32, 64")
    A("v_bfe_u32 v8, v0, 2, 2")
    A("v_xor_b32 v8, v8, v7")
    A("v_and_b32 v9, 1, v8")
    A(f"v_mul_lo_u32 v9, v9, s{s_t1}")
    A("v_lshrrev_b32 v8, 1, v8")
    A(f"v_mul_lo_u32 v8, v8, s{s_t2}")
    A(f"v_add3_u32 v8, v8, v9, s{s_t0}")
    A("v_lshlrev_b32 v8, 1, v8")
    A("v_and_b32 v9, 3, v0")
    A("v_lshl_add_u32 v8, v9, 4, v8")
    A(f"v_mul_lo_u32 v9, v7, s{s_str}")
    A(f"v_add_u32 v{vWd}, v8, v9")
    A(f"v_lshlrev_b32 v{vL16}, 4, v0")
    A(f"s_lshl_b32 s{s_xoff}, s{s_rb}, 17")
    A(f"s_lshl_b32 s{s_t0}, s{s_w}, 15")
    A(f"s_add_u32 s{s_xoff}, s{s_xoff}, s{s_t0}")
    A(f"s_lshl_b32 s{s_t0}, s{s_w}, 4")
    A(f"s_mul_i32 s{s_woff}, s{s_t0}, s{s_str}")
    A(f"s_lshl_b32 s{s_m0x}, s{s_w}, 12")
    A(f"s_lshl_b32 s{s_str}, s{s_str}, 2")

    def dma_stage(st):
        slot = st & 3
        for ii in range(4):
            A(f"s_add_u32 m0, s{s_m0x}, {slot*32768 + ii*1024}")
            A(f"s_add_u32 s{s_t0}, s{s_xoff}, {ii*8192 + st*128}")
            A(f"buffer_load_dwordx4 v{vXo if ii&1 else vXe}, {sr(sX,4)}, s{s_t0} offen lds")
        for ii in range(4):
            A(f"s_add_u32 m0, s{s_m0x}, {slot*32768 + 16384 + ii*1024}")
            A(f"s_mul_i32 s{s_t0}, s{s_str}, {st*16 + ii}")
            A(f"s_add_u32 s{s_t0}, s{s_t0}, s{s_woff}")
            A(f"buffer_load_dwordx4 v{vWd}, {sr(sW,4)}, s{s_t0} offen lds")

    A(f"s_cmp_lg_u32 s{s_type}, 2")
    A("s_cbranch_scc1 K1_NOG3LOAD")
    for m, sd in ((0, sWV), (1, sWK)):
        A(f"s_add_u32 m0, s{s_m0x}, {131072 + m*16384}")
        A("s_nop 0")
        for ii in range(4):
            A(f"buffer_load_dwordx4 v{vL16}, {sr(sd,4)}, s{s_m0x} offen offset:{ii*1024} lds")
    A("K1_NOG3LOAD:")
    for st in range(4): dma_stage(st)

    vXA, vWA = 10, 18
    vGX, vGW = 22, 24
    A(f"s_lshr_b32 s{s_t0}, s{s_w}, 1")
    A(f"s_and_b32 s{s_t1}, s{s_w}, 1")
    A("v_and_b32 v6, 31, v0")
    A("v_lshrrev_b32 v7, 5, v0")
    A("v_bfe_u32 v8, v0, 1, 3")
    A("v_lshlrev_b32 v9, 7, v6")
    A(f"s_lshl_b32 s{s_t2}, s{s_t0}, 13")
    for ks in range(4):
        A(f"v_or_b32 v26, {2*ks}, v7")
        A("v_xor_b32 v26, v26, v8")
        A("v_lshl_add_u32 v26, v26, 4, v9")
        A(f"v_add_u32 v{vXA+ks}, s{s_t2}, v26")
        A(f"v_add_u32 v{vXA+4+ks}, 0x10000, v{vXA+ks}")
    A(f"s_lshl_b32 s{s_t2}, s{s_w}, 1")
    A(f"v_or_b32 v26, s{s_t2}, v7")
    A("v_xor_b32 v26, v26, v8")
    A("v_lshl_add_u32 v26, v26, 4, v9")
    A(f"s_lshl_b32 s{s_t2}, s{s_cb}, 12")
    A(f"v_add_u32 v{vGX}, s{s_t2}, v26")
    A(f"v_add_u32 v{vGX+1}, 0x10000, v{vGX}")
    A("v_bfe_u32 v26, v0, 2, 2")
    A("v_lshl_add_u32 v27, v7, 3, v26")
    A(f"s_lshl_b32 s{s_t2}, s{s_t1}, 1")
    A(f"v_xor_b32 v28, s{s_t2}, v26")
    A("v_lshlrev_b32 v28, 6, v28")
    A("v_lshl_add_u32 v28, v27, 8, v28")
    A("v_bfe_u32 v29, v0, 4, 1")
    A("v_lshl_add_u32 v28, v29, 5, v28")
    A("v_and_b32 v30, 3, v0")
    A("v_lshl_add_u32 v28, v30, 3, v28")
    A(f"v_add_u32 v{vWA}, 16384, v28")
    A(f"v_xor_b32 v{vWA+1}, 64, v{vWA}")
    A(f"v_add_u32 v{vWA+2}, 0x10000, v{vWA}")
    A(f"v_add_u32 v{vWA+3}, 0x10000, v{vWA+1}")
    A("v_lshlrev_b32 v28, 14, v29")
    A("v_lshl_add_u32 v28, v27, 5, v28")
    A("v_lshl_add_u32 v28, v30, 3, v28")
    A(f"s_lshl_b32 s{s_t2}, s{s_w}, 9")
    A(f"s_add_u32 s{s_t2}, s{s_t2}, 131072")
    A(f"v_add_u32 v{vGW}, s{s_t2}, v28")

    FR = 32
    GF = 64
    ACC = 72
    G1, G2 = 136, 152
    TMP = 168
    for i in range(ACC, ACC + 96): A(f"v_mov_b32 v{i}, 0")

    def reads(q, g3):
        st, ks = q >> 2, q & 3
        slot = st & 3; hi = slot >> 1; so = (slot & 1) * 32768
        f = FR + (q & 1) * 16
        n = 0
        for rt in range(2):
            A(f"ds_read_b128 {vr(f+4*rt,4)}, v{vXA+4*hi+ks} offset:{so + rt*4096}"); n += 1
        for c in range(2):
            for t in range(2):
                A(f"ds_read_b64_tr_b16 {vr(f+8+4*c+2*t,2)}, v{vWA+2*hi+c} offset:{so + (16*ks+4*t)*256}"); n += 1
        if g3 and ks == 1:
            A(f"ds_read_b128 {vr(GF,4)}, v{vGX+hi} offset:{so}"); n += 1
            for t in range(2):
                A(f"ds_read_b64_tr_b16 {vr(GF+4+2*t,2)}, v{vGW} offset:{st*2048 + t*128}"); n += 1
        return n
    def mfmas(q, orient, g3):
        f = FR + (q & 1) * 16
        for c in range(2):
            for rt in range(2):
                acc = ACC + (c*2+rt)*16
                x = vr(f+4*rt, 4); w = vr(f+8+4*c, 4)
                a, b = (x, w) if orient == 0 else (w, x)
                A(f"v_mfma_f32_32x32x16_bf16 {vr(acc,16)}, {a}, {b}, {vr(acc,16)}")
        if g3 and (q & 3) == 1:
            A(f"v_mfma_f32_32x32x16_bf16 {vr(G1,16)}, {vr(GF+4,4)}, {vr(GF,4)}, {vr(G1,16)}")
            A(f"v_mfma_f32_32x32x16_bf16 {vr(G2,16)}, {vr(GF,4)}, {vr(GF+4,4)}, {vr(G2,16)}")
    def mainloop(orient, g3):
        A("s_waitcnt vmcnt(24)")
        A("s_barrier")
        reads(0, g3)
        for q in range(32):
            if q + 1 < 32:
                if (q + 1) & 3 == 0:
                    st = (q + 1) >> 2
                    later = min(st + 2, 7) - st
                    A(f"s_waitcnt vmcnt({8*later}) lgkmcnt(0)")
                    A("s_barrier")
                    reads(q + 1, g3)
                    if st + 3 <= 7: dma_stage(st + 3)
                else:
                    n = reads(q + 1, g3)
                    A(f"s_waitcnt lgkmcnt({n})")
            else:
                A("s_waitcnt lgkmcnt(0)")
            mfmas(q, orient, g3)

    A(f"s_cmp_eq_u32 s{s_type}, 1")
    A("s_cbranch_scc1 K1_QA")
    A(f"s_cmp_eq_u32 s{s_type}, 2")
    A("s_cbranch_scc1 K1_QB")
    mainloop(0, False)
    phi(A, ACC, 32, TMP, s_l2e, s_eps)
    PK, VV = TMP, TMP + 16
    for i in range(16): A(f"v_cvt_pk_bf16_f32 v{VV+i}, v{ACC+32+2*i}, v{ACC+33+2*i}")
    for i in range(16): A(f"v_cvt_pk_bf16_f32 v{PK+i}, v{ACC+2*i}, v{ACC+1+2*i}")
    ONES = FR
    for i in range(4): A(f"v_mov_b32 v{ONES+i}, 0x3f803f80")
    for i in range(4):
        A(f"v_mfma_f32_32x32x16_bf16 {vr(G1,16)}, {vr(PK+4*i,4)}, {vr(VV+4*i,4)}, {vr(G1,16)}")
        A(f"v_mfma_f32_32x32x16_bf16 {vr(G2,16)}, {vr(PK+4*i,4)}, {vr(ONES,4)}, {vr(G2,16)}")
    A("v_and_b32 v6, 31, v0")
    A("v_cmp_gt_u32 vcc, 16, v6")
    for i in range(8): A(f"v_cndmask_b32 v{G1+i}, v{G2+i}, v{G1+i}, vcc")
    for i in range(8, 16): A(f"v_cndmask_b32 v{G1+i}, v{G1+i}, v{G2+i}, vcc")
    A("s_barrier")
    A(f"s_and_b32 s{s_t1}, s{s_w}, 1")
    A(f"s_lshl_b32 s{s_t1}, s{s_t1}, 12")
    A(f"v_add_u32 v7, s{s_t1}, v{vL16}")
    A(f"s_cmp_lt_u32 s{s_w}, 2")
    A("s_cbranch_scc1 K1_KV_RD")
    for i in range(4): A(f"ds_write_b128 v7, {vr(G1+4*i,4)} offset:{i*1024}")
    A("s_waitcnt lgkmcnt(0)")
    A("s_barrier")
    A("s_endpgm")
    A("K1_KV_RD:")
    A("s_barrier")
    for i in range(4): A(f"ds_read_b128 {vr(G2+4*i,4)}, v7 offset:{i*1024}")
    A("v_lshrrev_b32 v8, 5, v0")
    A("v_lshlrev_b32 v8, 10, v8")
    A("v_lshl_add_u32 v8, v6, 5, v8")
    A("v_mov_b32 v9, 0x7ffffff0")
    A("v_cmp_ge_u32 vcc, 16, v6")
    A("v_cndmask_b32 v26, v9, v8, vcc")
    A("v_cmp_le_u32 vcc, 15, v6")
    A("v_cndmask_b32 v27, v9, v8, vcc")
    A(f"s_lshl_b32 s{s_t0}, s{s_rb}, 16")
    A(f"s_lshl_b32 s{s_t2}, s{s_cb}, 13")
    A(f"s_add_u32 s{s_t0}, s{s_t0}, s{s_t2}")
    A(f"s_add_u32 s{s_t0}, s{s_t0}, s{s_t1}")
    A(f"s_add_u32 s{s_t0}, s{s_t0}, {WS_KVP}")
    A("s_waitcnt lgkmcnt(0)")
    for i in range(0, 16, 2): A(f"v_pk_add_f32 {vr(G1+i,2)}, {vr(G1+i,2)}, {vr(G2+i,2)}")
    A(f"buffer_store_dwordx4 {vr(G1,4)}, v26, {sr(sWS,4)}, s{s_t0} offen")
    A(f"buffer_store_dwordx4 {vr(G1+4,4)}, v26, {sr(sWS,4)}, s{s_t0} offen offset:16")
    A(f"buffer_store_dwordx4 {vr(G1+8,4)}, v27, {sr(sWS,4)}, s{s_t0} offen offset:2048")
    A(f"buffer_store_dwordx4 {vr(G1+12,4)}, v27, {sr(sWS,4)}, s{s_t0} offen offset:2064")
    A("s_endpgm")

    def qstore(wsbase):
        A(f"s_lshl_b32 s{s_t0}, s{s_rb}, 17")
        A(f"s_lshr_b32 s{s_t1}, s{s_w}, 1")
        A(f"s_lshl_b32 s{s_t1}, s{s_t1}, 16")
        A(f"s_add_u32 s{s_t0}, s{s_t0}, s{s_t1}")
        A(f"s_lshl_b32 s{s_t1}, s{s_cb}, 13")
        A(f"s_add_u32 s{s_t0}, s{s_t0}, s{s_t1}")
        A(f"s_and_b32 s{s_t1}, s{s_w}, 1")
        A(f"s_lshl_b32 s{s_t1}, s{s_t1}, 12")
        A(f"s_add_u32 s{s_t0}, s{s_t0}, s{s_t1}")
        A(f"s_add_u32 s{s_t0}, s{s_t0}, {wsbase}")
        A(f"s_add_u32 s{s_t1}, s{s_t0}, 32768")
        for c in range(2):
            for rt in range(2):
                acc = ACC + (c*2+rt)*16
                o = TMP + 32 + (c*2+rt)*8
                for i in range(8): A(f"v_cvt_pk_bf16_f32 v{o+i}, v{acc+2*i}, v{acc+2*i+1}")
                for hf in range(2):
                    A(f"buffer_store_dwordx4 {vr(o+4*hf,4)}, v{vL16}, {sr(sWS,4)}, s{s_t1 if rt else s_t0} offen offset:{(2*c+hf)*1024}")
    A("K1_QA:")
    mainloop(1, False)
    phi(A, ACC, 32, TMP, s_l2e, s_eps)
    phi(A, ACC+32, 32, TMP, s_l2e, s_eps)
    qstore(WS_PQ)
    A("s_endpgm")
    A("K1_QB:")
    mainloop(1, True)
    A("s_barrier")
    A(f"s_mul_i32 s{s_t0}, s{s_w}, 6144")
    A(f"v_add_u32 v7, s{s_t0}, v{vL16}")
    for i in range(2): A(f"ds_write_b128 v7, {vr(G1+8+4*i,4)} offset:{i*1024}")
    for i in range(4): A(f"ds_write_b128 v7, {vr(G2+4*i,4)} offset:{(2+i)*1024}")
    for i in range(0, 64, 2): A(f"v_pk_mul_f32 {vr(ACC+i,2)}, {vr(ACC+i,2)}, {sr(s_qs,2)}")
    A("s_waitcnt lgkmcnt(0)")
    A("s_barrier")
    A(f"s_cmp_eq_u32 s{s_w}, 3")
    A("s_cbranch_scc1 K1_QB_ST")
    A(f"s_lshl_b32 s{s_t0}, s{s_w}, 11")
    A(f"v_add_u32 v7, s{s_t0}, v{vL16}")
    R = G1
    for ww in range(4):
        for i in range(2): A(f"ds_read_b128 {vr(R+8*ww+4*i,4)}, v7 offset:{ww*6144 + i*1024}")
    A("v_and_b32 v6, 31, v0")
    A("v_lshrrev_b32 v8, 5, v0")
    A("v_and_b32 v9, 0x13, v6")
    A("v_bfe_u32 v26, v6, 2, 1")
    A("v_lshl_or_b32 v9, v26, 3, v9")
    A("v_bfe_u32 v26, v6, 3, 1")
    A("v_lshl_or_b32 v9, v26, 2, v9")
    A("v_lshl_add_u32 v9, v8, 5, v9")
    A("v_lshlrev_b32 v9, 4, v9")
    A("v_lshl_add_u32 v26, v8, 4, v6")
    A("v_lshlrev_b32 v26, 4, v26")
    A("v_mov_b32 v27, 0x7ffffff0")
    A("v_cmp_gt_u32 vcc, 16, v6")
    A("v_cndmask_b32 v26, v27, v26, vcc")
    A("v_mov_b32 v27, 512")
    A("v_cmp_eq_u32 s[66:67], 16, v0")
    A("v_cndmask_b32 v26, v26, v27, s[66:67]")
    A("v_mov_b32 v27, 528")
    A("v_cmp_eq_u32 s[68:69], 17, v0")
    A("v_cndmask_b32 v26, v26, v27, s[68:69]")
    A(f"s_mul_i32 s{s_t1}, s{s_w}, 544")
    A(f"s_add_u32 s{s_t1}, s{s_t1}, {1024-544}")
    A(f"s_cmp_eq_u32 s{s_w}, 0")
    A(f"s_cselect_b32 s{s_t1}, 0, s{s_t1}")
    A("s_cselect_b64 s[70:71], -1, 0")
    A("s_cselect_b64 s[66:67], 0, s[66:67]")
    A("s_cselect_b64 s[68:69], 0, s[68:69]")
    A("v_cndmask_b32 v26, v26, v9, s[70:71]")
    A(f"s_lshl_b32 s{s_t0}, s{s_rb}, 2")
    A(f"s_add_u32 s{s_t0}, s{s_t0}, s{s_cb}")
    A(f"s_mul_i32 s{s_t0}, s{s_t0}, {TILE}")
    A(f"s_add_u32 s{s_t0}, s{s_t0}, s{s_t1}")
    A(f"s_add_u32 s{s_t0}, s{s_t0}, {WS_KV}")
    A("s_waitcnt lgkmcnt(0)")
    for i in range(0, 8, 2):
        A(f"v_pk_add_f32 {vr(R+i,2)}, {vr(R+i,2)}, {vr(R+8+i,2)}")
        A(f"v_pk_add_f32 {vr(R+16+i,2)}, {vr(R+16+i,2)}, {vr(R+24+i,2)}")
    for i in range(0, 8, 2):
        A(f"v_pk_add_f32 {vr(R+i,2)}, {vr(R+i,2)}, {vr(R+16+i,2)}")
    for i in range(4): A(f"v_cvt_pk_bf16_f32 v{R+8+i}, v{R+2*i}, v{R+2*i+1}")
    A("v_mov_b32 v27, 0x3f803f80")
    for i in range(4): A(f"v_cndmask_b32 v{R+8+i}, v{R+8+i}, v27, s[66:67]")
    for i in range(4): A(f"v_cndmask_b32 v{R+8+i}, v{R+8+i}, 0, s[68:69]")
    A(f"buffer_store_dwordx4 {vr(R+8,4)}, v26, {sr(sWS,4)}, s{s_t0} offen")
    A("K1_QB_ST:")
    qstore(WS_QB)
    A("K1_END:")
    A("s_endpgm")
    footer(A, name, 256)

def gen_k2(A):
    name = "attn_kernel"
    header(A, name)
    sWS = 4
    s_w, s_g, s_j, s_t0, s_t1, s_t2, s_kh, s_it, s_pass = 8, 9, 10, 11, 12, 13, 14, 15, 16
    s_eps = 18
    A("s_cmp_ge_u32 s2, 256")
    A("s_cbranch_scc1 K2_END")
    A("s_load_dwordx2 s[20:21], s[0:1], 80")
    A("v_lshrrev_b32 v1, 6, v0")
    A("v_and_b32 v0, 63, v0")
    A(f"v_readfirstlane_b32 s{s_w}, v1")
    A(f"s_lshr_b32 s{s_g}, s2, 3")
    A(f"s_and_b32 s{s_j}, s2, 7")
    A(f"s_lshr_b32 s{s_kh}, s{s_w}, 2")
    vL16 = 2
    A(f"v_lshlrev_b32 v{vL16}, 4, v0")
    A("s_waitcnt lgkmcnt(0)")
    srd(A, sWS, 20, WS_SIZE)
    QA_, QB_ = 4, 8
    A(f"s_lshl_b32 s{s_t0}, s{s_g}, 16")
    A(f"s_bfe_u32 s{s_t1}, s{s_w}, 0x10001")
    A(f"s_lshl_b32 s{s_t1}, s{s_t1}, 15")
    A(f"s_add_u32 s{s_t0}, s{s_t0}, s{s_t1}")
    A(f"s_lshl_b32 s{s_t1}, s{s_j}, 12")
    A(f"s_add_u32 s{s_t0}, s{s_t0}, s{s_t1}")
    A(f"s_and_b32 s{s_t1}, s{s_w}, 1")
    A(f"s_lshl_b32 s{s_t1}, s{s_t1}, 11")
    A(f"s_add_u32 s22, s{s_t0}, s{s_t1}")
    A(f"s_add_u32 s{s_t0}, s22, {WS_QB}")
    A(f"buffer_load_dwordx4 {vr(QA_,4)}, v{vL16}, {sr(sWS,4)}, s{s_t0} offen")
    A(f"buffer_load_dwordx4 {vr(QB_,4)}, v{vL16}, {sr(sWS,4)}, s{s_t0} offen offset:1024")
    A(f"s_mul_i32 s23, s{s_kh}, 67584")
    A(f"s_and_b32 s{s_t1}, s{s_w}, 3")
    A(f"s_lshl_b32 s{s_t1}, s{s_t1}, 10")
    A(f"s_add_u32 s{s_t1}, s{s_t1}, s23")
    for n in range(17):
        A(f"s_add_u32 m0, s{s_t1}, {n*4096}")
        A(f"s_add_u32 s{s_t0}, s{s_t1}, {WS_KV + n*4096}")
        A(f"buffer_load_dwordx4 v{vL16}, {sr(sWS,4)}, s{s_t0} offen lds")
    PB = 128
    A("v_and_b32 v12, 31, v0")
    A("v_lshrrev_b32 v13, 5, v0")
    A("v_min_u32 v14, 16, v12")
    A("v_max_u32 v15, 15, v12")
    A(f"s_cmp_eq_u32 s{s_kh}, 0")
    A("s_cselect_b64 s[24:25], -1, 0")
    A("v_cndmask_b32 v14, v15, v14, s[24:25]")
    A("v_lshlrev_b32 v14, 5, v14")
    A("v_lshl_add_u32 v14, v13, 10, v14")
    A(f"s_lshl_b32 s{s_t0}, s{s_j}, 2")
    A(f"s_and_b32 s{s_t1}, s{s_w}, 1")
    A(f"s_lshl_b32 s{s_t1}, s{s_t1}, 1")
    A(f"s_add_u32 s{s_t0}, s{s_t0}, s{s_t1}")
    A(f"s_add_u32 s{s_t0}, s{s_t0}, s{s_kh}")
    A(f"s_lshl_b32 s{s_t0}, s{s_t0}, 11")
    A(f"s_add_u32 s{s_t0}, s{s_t0}, {WS_KVP}")
    for p in range(16):
        A(f"buffer_load_dwordx4 {vr(PB+8*p,4)}, v14, {sr(sWS,4)}, s{s_t0} offen")
        A(f"buffer_load_dwordx4 {vr(PB+8*p+4,4)}, v14, {sr(sWS,4)}, s{s_t0} offen offset:16")
        if p < 15: A(f"s_add_u32 s{s_t0}, s{s_t0}, 65536")
    A(f"s_lshl_b32 s{s_t1}, s{s_kh}, 10")
    A(f"s_add_u32 s26, s22, s{s_t1}")
    A(f"s_add_u32 s{s_t0}, s26, {WS_PQ}")
    A(f"buffer_load_dwordx4 {vr(16,4)}, v{vL16}, {sr(sWS,4)}, s{s_t0} offen")
    A("s_waitcnt vmcnt(0)")
    st = 8
    while st >= 1:
        for p in range(st):
            for i in range(0, 8, 2):
                A(f"v_pk_add_f32 {vr(PB+8*p+i,2)}, {vr(PB+8*p+i,2)}, {vr(PB+8*(p+st)+i,2)}")
        st //= 2
    for i in range(4): A(f"v_cvt_pk_bf16_f32 v{20+i}, v{PB+2*i}, v{PB+2*i+1}")
    A(f"v_mfma_f32_32x32x16_bf16 {vr(PB+16,16)}, {vr(20,4)}, {vr(16,4)}, 0")
    D = PB + 16
    A(f"v_cndmask_b32 v24, v{D}, v{D+8}, s[24:25]")
    for i in range(8): A(f"v_cndmask_b32 v{D+i}, v{D+8+i}, v{D+i}, s[24:25]")
    A(f"v_add_f32 v24, {f32(1e-6)}, v24")
    A("v_rcp_f32 v24, v24")
    for i in range(8): A(f"v_mul_f32 v{D+i}, v{D+i}, v24")
    for i in range(4): A(f"v_cvt_pk_bf16_f32 v{20+i}, v{D+2*i}, v{D+2*i+1}")
    A(f"s_add_u32 s{s_t0}, s26, {WS_OA}")
    A(f"buffer_store_dwordx4 {vr(20,4)}, v{vL16}, {sr(sWS,4)}, s{s_t0} offen")
    A("s_barrier")
    vKA, vVA, vIDX = 12, 13, 14
    KF = [24, 36]
    CA, CB = 48, 64
    SA, SB = 80, 96
    OA_, OB_ = 112, 128
    MA, MB = 16, 17
    A("v_and_b32 v15, 31, v0")
    A("v_lshrrev_b32 v18, 5, v0")
    A("v_lshl_add_u32 v18, v18, 4, v15")
    A("v_lshlrev_b32 v18, 4, v18")
    A("v_mov_b32 v19, 528")
    A("v_cmp_gt_u32 vcc, 16, v15")
    A("v_cndmask_b32 v18, v19, v18, vcc")
    A("v_and_b32 v19, 27, v15")
    A("v_cmp_eq_u32 vcc, 16, v19")
    A("v_mov_b32 v19, 512")
    A("v_cndmask_b32 v18, v18, v19, vcc")
    A(f"s_add_u32 s{s_t0}, s23, 1024")
    A(f"v_add_u32 v20, s{s_t0}, v18")
    A(f"v_add_u32 v21, s23, v{vL16}")
    A(f"v_mov_b32 v{vIDX}, 0xdddd")
    A(f"s_mov_b32 s{s_pass}, 0")
    A(f"ds_read_b128 {vr(KF[0],4)}, v21")
    A("s_waitcnt lgkmcnt(0)")
    A(f"v_mfma_f32_32x32x16_bf16 {vr(SA,16)}, {vr(KF[0],4)}, {vr(QA_,4)}, 0")
    A(f"v_mfma_f32_32x32x16_bf16 {vr(SB,16)}, {vr(KF[0],4)}, {vr(QB_,4)}, 0")
    def maxred(S, M, init):
        if init:
            A(f"v_max3_f32 v{M}, v{S}, v{S+1}, v{S+2}")
            A(f"v_max_f32 v{M}, v{M}, v{S+3}")
            r = range(4, 16, 2)
        else: r = range(0, 16, 2)
        for i in r: A(f"v_max3_f32 v{M}, v{M}, v{S+i}, v{S+i+1}")
    maxred(SA, MA, True); maxred(SB, MB, True)
    A("K2_SETM:")
    for M in (MA, MB):
        A(f"v_mov_b32 v18, v{M}")
        A(f"v_permlane32_swap_b32 v18, v{M}")
        A(f"v_max_f32 v{M}, v{M}, v18")
    for i in range(16):
        A(f"v_sub_f32 v{CA+i}, 0, v{MA}")
        A(f"v_sub_f32 v{CB+i}, 0, v{MB}")
        A(f"v_mov_b32 v{OA_+i}, 0")
        A(f"v_mov_b32 v{OB_+i}, 0")
    A(f"v_mov_b32 v{vKA}, v21")
    A(f"v_mov_b32 v{vVA}, v20")
    def rdK(t): A(f"ds_read_b128 {vr(KF[t&1],4)}, v{vKA} offset:{t*TILE}")
    def rdV(t, i): A(f"ds_read_b128 {vr(KF[t&1]+4+4*i,4)}, v{vVA} offset:{t*TILE + i*544}")
    def mS(S, t, Q, C): A(f"v_mfma_f32_32x32x16_bf16 {vr(S,16)}, {vr(KF[t&1],4)}, {vr(Q,4)}, {vr(C,16)}")
    def sm(O, t, i, S): A(f"v_smfmac_f32_32x32x32_bf16 {vr(O,16)}, {vr(KF[t&1]+4+4*i,4)}, {vr(S+8*i,8)}, v{vIDX}")
    def ex(S, a, b):
        for i in range(a, b): A(f"v_exp_f32 v{S+i}, v{S+i}")
    rdK(0); rdV(0, 0); rdV(0, 1)
    for i in range(8, 16): A(f"v_mov_b32 v{SB+i}, 0")
    for i in range(4): A(f"v_mov_b32 v{KF[1]+8+i}, 0")
    A("s_waitcnt lgkmcnt(2)")
    mS(SA, 0, QA_, CA)
    A(f"s_mov_b32 s{s_it}, 0")
    A("K2_LOOP:")
    NT = 8
    for t in range(NT):
        ex(SA, 0, 2)
        sm(OB_, t-1, 1, SB)
        rdK(t+1)
        ex(SA, 2, 6)
        mS(SB, t, QB_, CB)
        rdV(t+1, 0)
        ex(SA, 6, 11)
        A("s_waitcnt lgkmcnt(3)")
        sm(OA_, t, 0, SA)
        ex(SA, 11, 16)
        ex(SB, 0, 2)
        A("s_waitcnt lgkmcnt(2)")
        sm(OA_, t, 1, SA)
        rdV(t+1, 1)
        ex(SB, 2, 6)
        A("s_waitcnt lgkmcnt(2)")
        mS(SA, t+1, QA_, CA)
        ex(SB, 6, 11)
        sm(OB_, t, 0, SB)
        if t == NT - 1:
            A(f"v_add_u32 v{vKA}, {NT*TILE}, v{vKA}")
            A(f"v_add_u32 v{vVA}, {NT*TILE}, v{vVA}")
        ex(SB, 11, 16)
    A(f"s_add_u32 s{s_it}, s{s_it}, 1")
    A(f"s_cmp_lt_u32 s{s_it}, {32//NT}")
    A("s_cbranch_scc1 K2_LOOP")
    sm(OB_, NT-1, 1, SB)
    A("s_waitcnt lgkmcnt(0)")
    A(f"s_cmp_lg_u32 s{s_pass}, 0")
    A("s_cbranch_scc1 K2_FIN")
    A(f"v_max3_f32 v18, |v{OA_}|, |v{OA_+1}|, |v{OA_+2}|")
    for a, b in ((OA_+3, OA_+4), (OA_+5, OA_+6), (OA_+7, OB_), (OB_+1, OB_+2), (OB_+3, OB_+4), (OB_+5, OB_+6)):
        A(f"v_max3_f32 v18, v18, |v{a}|, |v{b}|")
    A(f"v_max_f32 v18, v18, |v{OB_+7}|")
    A(f"v_mov_b32 v19, {f32(2.0**120)}")
    A("v_cmp_nlt_f32 vcc, v18, v19")
    A(f"v_mov_b32 v19, {f32(2.0**64)}")
    A(f"v_cmp_nlt_f32 s[28:29], v{OA_+8}, v19")
    A(f"v_cmp_nlt_f32 s[30:31], v{OB_+8}, v19")
    A("s_or_b64 s[28:29], s[28:29], s[30:31]")
    A("s_or_b64 s[28:29], s[28:29], vcc")
    A("s_cmp_eq_u64 s[28:29], 0")
    A("s_cbranch_scc1 K2_FIN")
    A(f"s_mov_b32 s{s_pass}, 1")
    A(f"v_mov_b32 v{vKA}, v21")
    A(f"s_mov_b32 s{s_it}, 0")
    A("K2_MAXLOOP:")
    A(f"ds_read_b128 {vr(KF[0],4)}, v{vKA}")
    A(f"v_add_u32 v{vKA}, {TILE}, v{vKA}")
    A("s_waitcnt lgkmcnt(0)")
    A(f"v_mfma_f32_32x32x16_bf16 {vr(SA,16)}, {vr(KF[0],4)}, {vr(QA_,4)}, 0")
    A(f"v_mfma_f32_32x32x16_bf16 {vr(SB,16)}, {vr(KF[0],4)}, {vr(QB_,4)}, 0")
    maxred(SA, MA, False); maxred(SB, MB, False)
    A(f"s_add_u32 s{s_it}, s{s_it}, 1")
    A(f"s_cmp_lt_u32 s{s_it}, 32")
    A("s_cbranch_scc1 K2_MAXLOOP")
    A("s_branch K2_SETM")
    A("K2_FIN:")
    XB = 135168 + 2048
    SN, KP = SA, SB
    for i in range(9):
        A(f"v_cndmask_b32 v{SN+i}, v{OA_+i}, v{OB_+i}, s[24:25]")
        A(f"v_cndmask_b32 v{KP+i}, v{OB_+i}, v{OA_+i}, s[24:25]")
    A(f"v_cndmask_b32 v{SN+9}, v{MA}, v{MB}, s[24:25]")
    A(f"v_cndmask_b32 v{KP+9}, v{MB}, v{MA}, s[24:25]")
    A(f"s_mul_i32 s{s_t0}, s{s_w}, 3072")
    A(f"s_add_u32 s{s_t0}, s{s_t0}, {XB}")
    A(f"v_add_u32 v18, s{s_t0}, v{vL16}")
    A(f"s_xor_b32 s{s_t1}, s{s_w}, 4")
    A(f"s_mul_i32 s{s_t1}, s{s_t1}, 3072")
    A(f"s_add_u32 s{s_t1}, s{s_t1}, {XB}")
    A(f"v_add_u32 v19, s{s_t1}, v{vL16}")
    for i in range(3): A(f"ds_write_b128 v18, {vr(SN+4*i,4)} offset:{i*1024}")
    A("s_waitcnt lgkmcnt(0)")
    A("s_barrier")
    for i in range(3): A(f"ds_read_b128 {vr(SN+4*i,4)}, v19 offset:{i*1024}")
    A("s_waitcnt lgkmcnt(0)")
    A(f"v_max_f32 v18, v{SN+9}, v{KP+9}")
    A(f"v_sub_f32 v19, v{SN+9}, v18")
    A(f"v_sub_f32 v18, v{KP+9}, v18")
    A("v_exp_f32 v19, v19")
    A("v_exp_f32 v18, v18")
    for i in range(9):
        A(f"v_mul_f32 v{KP+i}, v{KP+i}, v18")
        A(f"v_fmac_f32 v{KP+i}, v{SN+i}, v19")
    A(f"v_rcp_f32 v18, v{KP+8}")
    for i in range(8): A(f"v_mul_f32 v{KP+i}, v{KP+i}, v18")
    for i in range(4): A(f"v_cvt_pk_bf16_f32 v{20+i}, v{KP+2*i}, v{KP+2*i+1}")
    A(f"s_add_u32 s{s_t0}, s26, {WS_OB}")
    A(f"buffer_store_dwordx4 {vr(20,4)}, v{vL16}, {sr(sWS,4)}, s{s_t0} offen")
    A("K2_END:")
    A("s_endpgm")
    footer(A, name, 256)

def gen_k3(A):
    name = "oproj_kernel"
    header(A, name)
    sWS, sW, sO = 4, 8, 12
    s_w, s_p, s_rb, s_cb, s_t0, s_t1, s_t2 = 16, 17, 18, 19, 20, 21, 22
    A("s_cmp_ge_u32 s2, 256")
    A("s_cbranch_scc1 K3_END")
    A("s_load_dwordx2 s[24:25], s[0:1], 16")
    A("s_load_dwordx2 s[26:27], s[0:1], 56")
    A("s_load_dwordx2 s[28:29], s[0:1], 64")
    A("s_load_dwordx2 s[30:31], s[0:1], 80")
    A("v_lshrrev_b32 v1, 6, v0")
    A("v_and_b32 v0, 63, v0")
    A(f"v_readfirstlane_b32 s{s_w}, v1")
    A(f"s_bfe_u32 s{s_p}, s2, 0x10002")
    A(f"s_and_b32 s{s_rb}, s2, 3")
    A(f"s_lshl_b32 s{s_rb}, s{s_rb}, 2")
    A(f"s_lshr_b32 s{s_t0}, s2, 6")
    A(f"s_add_u32 s{s_rb}, s{s_rb}, s{s_t0}")
    A(f"s_bfe_u32 s{s_cb}, s2, 0x30003")
    vL16 = 2
    A(f"v_lshlrev_b32 v{vL16}, 4, v0")
    A("s_waitcnt lgkmcnt(0)")
    srd(A, sWS, 30, WS_SIZE)
    srd(A, sO, 28, 4194304)
    A(f"s_cmp_eq_u32 s{s_p}, 0")
    A(f"s_cselect_b32 s{sW}, s24, s26")
    A(f"s_cselect_b32 s{sW+1}, s25, s27")
    A(f"s_mov_b32 s{s_t2}, {WS_OB}")
    A(f"s_cselect_b32 s{s_t2}, {WS_OA}, s{s_t2}")
    A(f"s_and_b32 s{sW+1}, s{sW+1}, 0xffff")
    A(f"s_mov_b32 s{sW+2}, 524288")
    A(f"s_mov_b32 s{sW+3}, 0x00020000")
    A("v_lshrrev_b32 v3, 3, v0")
    A("v_bfe_u32 v4, v0, 4, 1")
    A("v_lshlrev_b32 v4, 2, v4")
    A("v_and_b32 v5, 7, v0")
    A("v_xor_b32 v5, v5, v4")
    A("v_lshlrev_b32 v5, 4, v5")
    A("v_lshl_add_u32 v3, v3, 10, v5")
    A(f"s_lshl_b32 s{s_t0}, s{s_cb}, 7")
    A(f"s_lshl_b32 s{s_t1}, s{s_w}, 13")
    A(f"s_add_u32 s{s_t0}, s{s_t0}, s{s_t1}")
    A(f"s_lshl_b32 s{s_t1}, s{s_w}, 10")
    A(f"s_lshl_b32 s32, s{s_rb}, 2")
    A(f"s_add_u32 s32, s32, s{s_w}")
    A(f"s_lshl_b32 s33, s32, 15")
    A(f"s_add_u32 s33, s33, s{s_t2}")
    OF = 64
    for grp in range(4):
        for n in range(4):
            i = grp*4 + n
            A(f"s_add_u32 m0, s{s_t1}, {i*4096}")
            A(f"s_add_u32 s34, s{s_t0}, {i*32768}")
            A(f"buffer_load_dwordx4 v3, {sr(sW,4)}, s34 offen lds")
        for n in range(8):
            h = grp*8 + n
            if n % 4 == 0: A(f"s_add_u32 s34, s33, {h*1024}")
            A(f"buffer_load_dwordx4 {vr(OF+4*h,4)}, v{vL16}, {sr(sWS,4)}, s34 offen offset:{(n%4)*1024}")
    A("v_bfe_u32 v4, v0, 2, 2")
    A("v_lshrrev_b32 v5, 5, v0")
    A("v_lshl_add_u32 v5, v5, 2, v4")
    A("v_lshlrev_b32 v5, 7, v5")
    A("v_lshrrev_b32 v4, 1, v4")
    A("v_lshl_add_u32 v5, v4, 6, v5")
    A("v_bfe_u32 v4, v0, 4, 1")
    A("v_lshl_add_u32 v5, v4, 5, v5")
    A("v_and_b32 v4, 3, v0")
    A("v_lshl_add_u32 v6, v4, 3, v5")
    A("v_xor_b32 v7, 64, v6")
    ACC = 32
    for i in range(32): A(f"v_mov_b32 v{ACC+i}, 0")
    WF = [8, 16]
    def rd(h):
        for ct in range(2):
            for t in range(2):
                A(f"ds_read_b64_tr_b16 {vr(WF[h&1]+4*ct+2*t,2)}, v{6+ct} offset:{(16*h+8*t)*128}")
    for h in range(32):
        if h % 8 == 0:
            grp = h // 8
            A(f"s_waitcnt vmcnt({12*(3-grp)})")
            A("s_barrier")
            rd(h)
        if h % 8 != 7:
            rd(h + 1)
            A("s_waitcnt lgkmcnt(4)")
        else:
            A("s_waitcnt lgkmcnt(0)")
        for ct in range(2):
            A(f"v_mfma_f32_32x32x16_bf16 {vr(ACC+16*ct,16)}, {vr(WF[h&1]+4*ct,4)}, {vr(OF+4*h,4)}, {vr(ACC+16*ct,16)}")
    A("v_and_b32 v4, 31, v0")
    A("v_lshlrev_b32 v4, 11, v4")
    A("v_lshrrev_b32 v5, 5, v0")
    A("v_lshl_add_u32 v4, v5, 4, v4")
    A(f"s_lshl_b32 s{s_t0}, s32, 16")
    A(f"s_lshl_b32 s{s_t1}, s{s_p}, 10")
    A(f"s_add_u32 s{s_t0}, s{s_t0}, s{s_t1}")
    A(f"s_lshl_b32 s{s_t1}, s{s_cb}, 7")
    A(f"s_add_u32 s{s_t0}, s{s_t0}, s{s_t1}")
    for ct in range(2):
        for q in range(2):
            o = OF + (ct*2+q)*4
            a = ACC + 16*ct + 8*q
            for i in range(4): A(f"v_cvt_pk_bf16_f32 v{o+i}, v{a+2*i}, v{a+2*i+1}")
            A(f"v_permlane32_swap_b32 v{o}, v{o+2}")
            A(f"v_permlane32_swap_b32 v{o+1}, v{o+3}")
            A(f"buffer_store_dwordx4 {vr(o,4)}, v4, {sr(sO,4)}, s{s_t0} offen offset:{ct*64+q*32}")
    A("K3_END:")
    A("s_endpgm")
    footer(A, name, 192)

def main(out):
    hdr = open(f"cdna_kernels/{NAME}.s.ref").read().split("; Override launch")[0]
    hdr += "; @launch kernel=proj_kernel grid=(256,1,1) block=(256,1,1) lds=163840\n"
    hdr += "; @launch kernel=attn_kernel grid=(256,1,1) block=(512,1,1) lds=161792\n"
    hdr += "; @launch kernel=oproj_kernel grid=(256,1,1) block=(256,1,1) lds=65536\n"
    hdr += '.amdgcn_target "amdgcn-amd-amdhsa--gfx950"\n'
    txt = hdr
    for g in (gen_k1, gen_k2, gen_k3):
        A = Asm(); g(A); txt += A.finalize()
    open(out, "w").write(txt)

if __name__ == "__main__":
    main(sys.argv[1] if len(sys.argv) > 1 else f"cdna_kernels/{NAME}.s")
```

```python
import sys
N="concat_heads__linear_attn_block__grouped_kv_mqa__prompt"
s=open(sys.argv[1]).read()
wave=int(sys.argv[2])
L="; @launch grid=(256,1,1) block=(768,1,1) lds=163840\n"
LK=f"; @launch kernel={N}_kernel grid=(256,1,1) block=(768,1,1) lds=163840\n"
LR="; @launch kernel=rep_kernel grid=(1,1,1) block=(256,1,1) lds=64\n"
def rk(k, mult):
    return f'''
.text
.globl rep_kernel
.p2align 8
.type rep_kernel,@function
rep_kernel:
    s_cmp_ge_u32 s2, 1
    s_cbranch_scc1 R_END
    s_load_dwordx2 s[4:5], s[0:1], 80
    v_lshlrev_b32 v1, 10, v0
    v_mov_b32 v4, 0
    v_mov_b32 v5, -1
    v_mov_b32 v6, 0
    ds_write_b32 v4, v5
    ds_write_b32 v4, v6 offset:4
    s_waitcnt lgkmcnt(0)
    s_and_b32 s5, s5, 0xffff
    s_mov_b32 s6, 0x1000000
    s_mov_b32 s7, 0x00020000
    s_mov_b32 s8, {0xE00000 + wave*64}
    buffer_load_dword v2, v1, s[4:7], s8 offen
    buffer_load_dword v3, v1, s[4:7], s8 offen offset:{4*k}
    s_barrier
    s_waitcnt vmcnt(0)
    ds_min_u32 v4, v2
    ds_max_u32 v4, v3 offset:4
    s_waitcnt lgkmcnt(0)
    s_barrier
    ds_read_b32 v5, v4
    ds_read_b32 v6, v4 offset:4
    s_waitcnt lgkmcnt(0)
    v_sub_u32 v5, v6, v5
    s_nop 1
    v_readfirstlane_b32 s10, v5
    s_nop 3
    s_min_u32 s10, s10, 6000
    s_mul_i32 s10, s10, {mult}
    s_memrealtime s[12:13]
    s_waitcnt lgkmcnt(0)
R_LOOP:
    s_memrealtime s[14:15]
    s_waitcnt lgkmcnt(0)
    s_sub_u32 s16, s14, s12
    s_cmp_lt_u32 s16, s10
    s_cbranch_scc1 R_LOOP
R_END:
    s_endpgm
.section .rodata,"a"
.p2align 6
.amdhsa_kernel rep_kernel
  .amdhsa_next_free_vgpr 16
  .amdhsa_next_free_sgpr 32
  .amdhsa_accum_offset 16
  .amdhsa_group_segment_fixed_size 0
  .amdhsa_kernarg_size 88
  .amdhsa_user_sgpr_count 2
  .amdhsa_user_sgpr_kernarg_segment_ptr 1
  .amdhsa_system_sgpr_workgroup_id_x 1
.end_amdhsa_kernel
'''
open("pr_base.s","w").write(s.replace(L,LK+LR)+rk(0,0))
for k in sys.argv[3:]:
    open(f"pr_{k}.s","w").write(s.replace(L,LK+LR)+rk(int(k),4))
```
